```python
import torch

def _softmax(x, axis=-1):
    return torch.softmax(x, dim=axis)
def _gelu(x):
    return torch.nn.functional.gelu(x, approximate="tanh")
def _silu(x):
    return torch.nn.functional.silu(x)
def _sigmoid(x):
    return torch.sigmoid(x)
def _layernorm(x, axis=-1, eps=1e-5):
    m = x.mean(dim=axis, keepdim=True)
    v = x.var(dim=axis, keepdim=True, unbiased=False)
    return (x - m) / torch.sqrt(v + eps)
def _scatter_add(tgt, idx, src, axis=0):
    return tgt.clone().index_add_(axis, idx, src)
def _segment_sum(src, seg, n):
    out = torch.zeros((n,) + src.shape[1:], dtype=src.dtype)
    return out.index_add_(0, seg, src)
def _pad(x, pw):
    flat = tuple(v for pair in reversed(pw) for v in pair)
    return torch.nn.functional.pad(x, flat)

kernel_name = 'sequential_preLN__ssm_conv_s4__glu_gated_bilinear__prompt'

def setup_inputs():

    _w = (lambda a: (lambda t: t.to(torch.bfloat16) if t.is_floating_point() else t)(torch.as_tensor(a)))
    def _A_setup():
        B, L, D, N = 1, 2048, 576, 128
        A_re = -(lambda _x: torch.exp(torch.as_tensor(_x)))((lambda *s: torch.randn(*s, dtype=torch.bfloat16) * 3.2)(D, N))
        A_im = torch.pi * (lambda *s: torch.randn(*s, dtype=torch.bfloat16) * 0.05)(D, N)
        B_re = (lambda *s: torch.randn(*s, dtype=torch.bfloat16) * 0.1)(D, N)
        B_im = (lambda *s: torch.randn(*s, dtype=torch.bfloat16) * 0.1)(D, N)
        C_re = (lambda *s: torch.randn(*s, dtype=torch.bfloat16) * 0.1)(D, N)
        C_im = (lambda *s: torch.randn(*s, dtype=torch.bfloat16) * 0.1)(D, N)
        log_dt = (lambda *s: torch.randn(*s, dtype=torch.bfloat16) * 0.05)(D) * 0.5 - 4.0
        Dskip = (lambda *s: torch.randn(*s, dtype=torch.bfloat16) * 0.05)(D)
        return {
            "u": _w((lambda *s: torch.randn(*s, dtype=torch.bfloat16) * 0.05)(B, L, D)),
            "A_re": _w(A_re),
            "A_im": _w(A_im),
            "B_re": _w(B_re),
            "B_im": _w(B_im),
            "C_re": _w(C_re),
            "C_im": _w(C_im),
            "log_dt": _w(log_dt),
            "Dskip": _w(Dskip),
        }
    _A_in = _A_setup()

    def _B_setup():
        B, S, D, F = 1, 2048, 576, 4608
        return {
            "x": _w((lambda *s: torch.randn(*s, dtype=torch.bfloat16) * 0.05)(B, S, D)),
            "w_gate": _w((lambda *s: torch.randn(*s, dtype=torch.bfloat16) * 0.4)(D, F) * (D ** -0.5)),
            "w_up": _w((lambda *s: torch.randn(*s, dtype=torch.bfloat16) * 0.4)(D, F) * (D ** -0.5)),
            "w_down": _w((lambda *s: torch.randn(*s, dtype=torch.bfloat16) * 0.4)(F, D) * (F ** -0.5)),
        }
    _B_in = _B_setup()

    return {
        "A_u": _A_in["u"],
        "A_A_re": _A_in["A_re"],
        "A_A_im": _A_in["A_im"],
        "A_B_re": _A_in["B_re"],
        "A_B_im": _A_in["B_im"],
        "A_C_re": _A_in["C_re"],
        "A_C_im": _A_in["C_im"],
        "A_log_dt": _A_in["log_dt"],
        "A_Dskip": _A_in["Dskip"],
        "B_x": _B_in["x"],
        "B_w_gate": _B_in["w_gate"],
        "B_w_up": _B_in["w_up"],
        "B_w_down": _B_in["w_down"],
    }

def reference(A_u, A_A_re, A_A_im, A_B_re, A_B_im, A_C_re, A_C_im, A_log_dt, A_Dskip, B_x, B_w_gate, B_w_up, B_w_down):
    def _A_ref(u, A_re, A_im, B_re, B_im, C_re, C_im, log_dt, Dskip):
        Bsz, L, D = u.shape
        dt = torch.exp(log_dt)[:, None]
        A = A_re + 1j * A_im
        Bc = B_re + 1j * B_im
        Cc = C_re + 1j * C_im
        logdA = dt * A
        dB = dt * Bc
        l = (lambda x, dt: x.to(dt))(torch.arange(L), A_re.dtype)
        P = torch.exp(logdA[:, :, None] * l[None, None, :])
        K = torch.einsum("dn,dnl,dn->dl", Cc, P, dB).real
        L2 = 2 * L
        Kp = _pad(K, ((0, 0), (0, L)))
        up = (lambda x, *d: x.permute(*d))(u, 0, 2, 1)
        up = _pad(up, ((0, 0), (0, 0), (0, L)))
        Kf = (lambda x, axes=(-2,-1): torch.fft.rfft2(x.float(), dim=axes))(Kp[:, None, :], axes=(-2, -1))
        Uf = (lambda x, axes=(-2,-1): torch.fft.rfft2(x.float(), dim=axes))(up[:, :, None, :], axes=(-2, -1))
        Yf = Uf * Kf[None, :, :, :]
        y = (lambda x, s, axes=(-2,-1): torch.fft.irfft2(x, s=s, dim=axes).to(torch.bfloat16))(Yf, (1, L2), axes=(-2, -1))[:, :, 0, :L]
        y = (lambda x, *d: x.permute(*d))(y, 0, 2, 1) + u * Dskip[None, None, :]
        return y

    def _B_ref(x, w_gate, w_up, w_down):
        g = torch.einsum("bsd,df->bsf", x, w_gate)
        u = torch.einsum("bsd,df->bsf", x, w_up)
        h = g * u
        return torch.einsum("bsf,fd->bsd", h, w_down)

    x = A_u
    h = x + _A_ref(_layernorm(x, axis=-1), A_A_re, A_A_im, A_B_re, A_B_im, A_C_re, A_C_im, A_log_dt, A_Dskip)
    h2 = h + _B_ref(_layernorm(h, axis=-1), B_w_gate, B_w_up, B_w_down)
    return h2
```

```python
import sys
sys.path.insert(0, "tools")
from asmlib import *

MB = 1 << 20
SZ = 2048*576*2
WS_UB = 0
WS_XB = WS_UB + SZ
WS_KT = WS_XB + SZ
WS_HG = WS_KT + 2*SZ
WS_XF = WS_HG + SZ
WS_HF = WS_XF + SZ
WS_PP = WS_HF + 8*SZ
WS_END = WS_PP + 4*SZ
WS_STAMP = 128*MB
WS_BYTES = 0x10000000

ARG = dict(x=0, Are=8, Aim=16, Bre=24, Bim=32, Cre=40, Cim=48, logdt=56, dskip=64, wg=80, wu=88, wd=96, out=104, dbg=112, ws=120)

def srd(a, s, base, nbytes):
    a(f"""s_mov_b32 s{s}, s{base}
    s_mov_b32 s{s+1}, s{base+1}
    s_mov_b32 s{s+2}, {nbytes:#x}
    s_mov_b32 s{s+3}, 0x00020000""")

class Diag:
    def __init__(self, on, kidx): self.on, self.kidx, self.n = on, kidx, 0
    def stamp(self, a, i):
        if self.on:
            a(f"s_memrealtime s[{84+2*i}:{85+2*i}]")
    def cyc(self, a, i):
        if self.on: a(f"s_memtime s[{76+2*i}:{77+2*i}]"); self.n = 1
    def flush(self, a, wsrd, nst, wpw, vt=4):
        if not self.on: return
        a("s_waitcnt vmcnt(0)")
        self.stamp(a, nst-1)
        a("s_waitcnt lgkmcnt(0)")
        a(f"""s_mul_i32 s82, s2, {wpw}
        s_add_u32 s82, s82, s6
        s_lshl_b32 s82, s82, 5
        s_add_u32 s82, s82, {WS_STAMP + self.kidx*0x40000}
        v_mov_b32 v{vt+8}, 0""")
        for i in range(8): a(f"v_mov_b32 v{vt+i}, s{84+2*min(i,nst-1)}")
        if self.n: a(f"s_sub_u32 s76, s78, s76\nv_mov_b32 v{vt+6}, s76")
        a(f"""buffer_store_dwordx4 v[{vt}:{vt+3}], v{vt+8}, s[{wsrd}:{wsrd+3}], s82 offen
        buffer_store_dwordx4 v[{vt+4}:{vt+7}], v{vt+8}, s[{wsrd}:{wsrd+3}], s82 offen offset:16""")

def round_bf16(a, v):
    a(f"v_cvt_pk_bf16_f32 v{v}, v{v}, v{v}\nv_and_b32 v{v}, 0xffff0000, v{v}")

def ln_finish(a, vs, vq, vt):
    a(f"""v_mul_f32 v{vs}, 0x3ae38e39, v{vs}
    v_mul_f32 v{vt}, v{vs}, v{vs}
    v_mul_f32 v{vq}, 0x3ae38e39, v{vq}
    v_sub_f32 v{vq}, v{vq}, v{vt}
    v_max_f32 v{vq}, 0, v{vq}""")
    round_bf16(a, vq)
    a(f"v_add_f32 v{vq}, 0x3727c5ac, v{vq}")
    round_bf16(a, vq)
    a(f"v_sqrt_f32 v{vq}, v{vq}")
    round_bf16(a, vs)
    round_bf16(a, vq)
    a(f"v_rcp_f32 v{vq}, v{vq}\ns_nop 0")
```

```python
NAME = "sequential_preLN__ssm_conv_s4__glu_gated_bilinear__prompt"

class Asm:
    def __init__(self):
        self.lines = []
        self.nlabel = 0
    def __call__(self, s):
        for l in s.strip("\n").split("\n"):
            self.lines.append("    " + l.strip() if l.strip() and not l.strip().endswith(":") else l.strip())
    def label(self, base="L"):
        self.nlabel += 1
        return f"{base}_{self.nlabel}"
    def text(self):
        return "\n".join(self.lines) + "\n"

def kernel_text(name, body):
    return f".globl {name}\n.p2align 8\n.type {name},@function\n{name}:\n{body}"

def kd(name, nvgpr, accum, nsgpr=102):
    return f""".amdhsa_kernel {name}
  .amdhsa_next_free_vgpr {nvgpr}
  .amdhsa_next_free_sgpr {nsgpr}
  .amdhsa_accum_offset {accum}
  .amdhsa_group_segment_fixed_size 0
  .amdhsa_kernarg_size 128
  .amdhsa_user_sgpr_count 2
  .amdhsa_user_sgpr_kernarg_segment_ptr 1
  .amdhsa_system_sgpr_workgroup_id_x 1
  .amdhsa_float_denorm_mode_32 3
.end_amdhsa_kernel
"""

def module(header_comment, kernels):
    out = []
    for l in header_comment.strip("\n").split("\n"):
        out.append("; " + l if not l.startswith(";") else l)
    for k in kernels:
        if k["name"] == NAME + "_kernel" and len(kernels) == 1:
            out.append(f"; @launch grid=({k['grid']},1,1) block=({k['block']},1,1) lds={k['lds']}")
            continue
        out.append(f"; @launch kernel={k['name']} grid=({k['grid']},1,1) block=({k['block']},1,1) lds={k['lds']}")
    out.append('.amdgcn_target "amdgcn-amd-amdhsa--gfx950"')
    out.append(".text")
    seen = set()
    for k in kernels:
        if k["name"] in seen: continue
        seen.add(k["name"])
        out.append(kernel_text(k["name"], k["body"]))
    out.append('.section .rodata,"a"')
    seen = set()
    for k in kernels:
        if k["name"] in seen: continue
        seen.add(k["name"])
        out.append(".p2align 6")
        out.append(kd(k["name"], k["nvgpr"], k["accum"], k.get("nsgpr", 102)))
    return "\n".join(out)

def reg(i):
    return f"v{i}" if i < 256 else f"a{i-256}"
def regs(i, n):
    if i < 256:
        assert i + n <= 256
        return f"v[{i}:{i+n-1}]"
    return f"a[{i-256}:{i-256+n-1}]"
```

```python
import re, sys

TRANS = ("v_exp_f32","v_log_f32","v_rcp_f32","v_rsq_f32","v_sqrt_f32","v_sin_f32","v_cos_f32","v_rcp_iflag_f32")
def parse_regs(tok):
    tok = tok.strip()
    tok = re.sub(r"^-", "", tok); tok = re.sub(r"^abs\((.*)\)$", r"\1", tok); tok = tok.strip("|")
    m = re.fullmatch(r"([vas])(\d+)", tok)
    if m: return {(m.group(1), int(m.group(2)))}
    m = re.fullmatch(r"([vas])\[(\d+):(\d+)\]", tok)
    if m: return {(m.group(1), i) for i in range(int(m.group(2)), int(m.group(3))+1)}
    if tok == "vcc": return {("s","vcc")}
    if tok in ("vcc_lo","vcc_hi"): return {("s","vcc")}
    if tok == "m0": return {("s","m0")}
    if tok in ("exec","exec_lo","exec_hi"): return {("s","exec")}
    return set()

class I:
    def __init__(self, text, ln):
        self.text, self.ln = text, ln
        p = text.split(None, 1)
        self.op = p[0]
        rest = p[1] if len(p) > 1 else ""
        self.mods = rest
        ops = [o.strip() for o in re.split(r",(?![^\[]*\])", rest)] if rest else []
        if ops: ops[-1] = ops[-1].split()[0] if ops[-1].split() else ""
        self.ops = ops
        op = self.op
        self.mfma = op.startswith("v_mfma")
        self.valu = op.startswith("v_") and not self.mfma
        self.salu = op.startswith("s_")
        self.ds = op.startswith("ds_")
        self.vmem = op.startswith(("buffer_","global_","flat_"))
        self.dpp = any(k in rest for k in ("row_shr","row_shl","row_ror","quad_perm","row_bcast","row_mirror","row_half_mirror","wave_sh","wave_ro","row_newbcast"))
        self.trans = op.replace("_e32","").replace("_e64","") in TRANS
        self.dot = op.startswith("v_dot")
        R = [parse_regs(o) for o in ops]
        w, r = set(), set()
        self.srcC = set(); self.srcAB = set(); self.sdata=set()
        if self.mfma:
            w = R[0]; self.srcAB = R[1]|R[2]; self.srcC = R[3]; r = self.srcAB|self.srcC
            self.passes = 8 if "32x32x16" in op else 4 if "16x16x32" in op else 2 if "4x4x4" in op else 16
        elif self.valu:
            if op.startswith("v_cmp"):
                w = R[0]; r = set().union(*R[1:])
                if op.startswith("v_cmpx"): w = w|{("s","exec")}
            elif op.startswith(("v_add_co","v_sub_co","v_addc_co","v_subb_co","v_subrev_co","v_mad_u64")):
                w = R[0]|R[1]; r = set().union(*R[2:])
            elif op.startswith(("v_permlane16_swap","v_permlane32_swap","v_swap")):
                w = R[0]|R[1]; r = R[0]|R[1]
            elif op == "v_nop": pass
            else:
                w = R[0]; r = set().union(*R[1:]) if len(R)>1 else set()
                if op.startswith(("v_fmac","v_writelane","v_dot2c","v_pk_fmac")) or self.dpp: r = r|R[0]
        elif self.ds:
            if op.startswith(("ds_read","ds_bpermute","ds_permute","ds_swizzle")) or "_rtn" in op: w = R[0]; r = set().union(*R[1:])
            else: r = set().union(*R)
        elif self.vmem:
            lds = re.search(r"\blds\b", rest) is not None
            self.ldsdma = lds
            if "load" in op and not lds: w = R[0]; r = set().union(*R[1:])
            elif "atomic" in op and re.search(r"\bsc0\b", rest): w = R[0]; r = set().union(*R)
            else:
                r = set().union(*R) if R else set()
                if "store" in op and ("x4" in op or "x3" in op):
                    self.sdata = R[0] if op.startswith("buffer") else R[1]
            if lds: r = r|{("s","m0")}
        elif self.salu:
            if op.startswith(("s_cmp","s_cbranch","s_branch","s_waitcnt","s_nop","s_barrier","s_endpgm","s_setprio","s_sleep","s_bitcmp")): r = set().union(*R) if R else set()
            else:
                w = R[0] if R else set(); r = set().union(*R[1:]) if len(R)>1 else set()
                if "saveexec" in op: w = w|{("s","exec")}
        self.w, self.r = w, r
        self.states = 1
        if op == "s_nop": self.states = int(ops[0],0)+1

def need(p, c):
    n = 0
    vw = {x for x in p.w if x[0] in "va"}; sw = {x for x in p.w if x[0]=="s"}
    if p.valu:
        if c.mfma and vw & c.r: n = max(n,2)
        if c.valu and c.dpp and vw & c.r: n = max(n,2)
        if c.op.startswith("v_permlane") and vw & c.r: n = max(n,2)
        if c.op.startswith(("v_readlane","v_readfirstlane")) and vw & c.r: n = max(n,1)
        if p.trans and c.valu and not c.trans and vw & c.r: n = max(n,1)
        if p.trans and (c.vmem or c.ds) and vw & c.r: n = max(n,1)
        if c.vmem and sw & c.r: n = max(n,5)
        if c.valu and sw & c.r: n = max(n, 4 if c.op.startswith(("v_readlane","v_writelane")) and c.ops and (parse_regs(c.ops[-1]) & sw) else 2)
        if ("s","exec") in sw:
            if c.dpp: n = max(n,5)
            if c.mfma or c.op.startswith(("v_readlane","v_readfirstlane","v_writelane","v_permlane")): n = max(n,4)
        if ("op_sel" in p.mods and not p.op.startswith("v_pk_")) or "sdwa" in p.op or "dst_sel" in p.mods:
            if c.valu and vw & (c.r|c.w): n = max(n,1)
        if p.dot and (vw & (c.r|c.w)) and not (c.op==p.op): n = max(n,3)
    if p.mfma:
        k = {2:0,4:1,8:2,16:3}[p.passes]
        if c.mfma:
            if vw & c.srcAB: n = max(n,[5,8,12,20][k])
            if vw & c.srcC:
                if c.srcC == vw and c.passes == p.passes: n = max(n,[2,0,0,0][k])
                else: n = max(n,[4,6,10,18][k])
            elif vw & c.w: n = max(n,[4,6,10,18][k])
        elif (c.valu or c.vmem or c.ds) and vw & (c.r|c.w): n = max(n,[5,8,12,20][k])
        if c.valu and p.srcC & c.w: n = max(n,[1,3,7,15][k])
    if p.salu and ("s","m0") in p.w and c.vmem and getattr(c,"ldsdma",False): n = max(n,1)
    if p.vmem and p.sdata and (p.sdata & c.w): n = max(n, 2 if c.valu or c.mfma else 1)
    return n

def lint(text, verbose=True):
    ins, labels = [], {}
    for ln, l in enumerate(text.split("\n"), 1):
        l = l.split(";")[0].strip()
        if not l or l.startswith("."): continue
        if l.endswith(":"): labels[l[:-1]] = len(ins); continue
        ins.append(I(l, ln))
    errs = set()
    W = 21
    def succ(i):
        x = ins[i]
        if x.op in ("s_endpgm", "s_setpc_b64"): return []
        if x.op == "s_branch": return [labels[x.ops[0]]]
        if x.op.startswith("s_cbranch"): return [i+1, labels[x.ops[0]]]
        return [i+1]
    for i, p in enumerate(ins):
        if not (p.valu or p.mfma or p.sdata or ("s","m0") in p.w): continue
        stack = [(j,0) for j in succ(i)]; seen=set()
        while stack:
            j, d = stack.pop()
            if j >= len(ins) or d >= W or (j,d) in seen: continue
            seen.add((j,d))
            c = ins[j]
            n = need(p,c)
            if n > d: errs.add((p.ln, c.ln, n, d, p.text, c.text))
            for k in succ(j): stack.append((k, d + c.states))
    for e in sorted(errs):
        if verbose: print(f"HAZARD line {e[0]} -> {e[1]}: need {e[2]} have {e[3]}\n    {e[4]}\n    {e[5]}")
    return len(errs)

if __name__ == "__main__":
    n = lint(open(sys.argv[1]).read())
    print("hazards:", n)
```

```python
import sys
sys.path.insert(0, "tools")
from asmlib import *

MB = 1 << 20
SZ = 2048*576*2
WS_UB = 0
WS_XB = WS_UB + SZ
WS_KT = WS_XB + SZ
WS_HG = WS_KT + 2*SZ
WS_XF = WS_HG + SZ
WS_HF = WS_XF + SZ
WS_PP = WS_HF + 8*SZ
WS_WDF = WS_PP + 4*SZ
WS_FL = WS_WDF + 576*4608*2
FL_H = WS_FL; FL_P = WS_FL + 32768; FL_LINES = 2048
FL_A = WS_FL + 128*2048; FL_B = WS_FL + 128*1408; FL_X = FL_B + 128*192; FL_D = FL_X + 128*256
WS_END = FL_A + 128*128
FL_B2 = FL_P; FL_B = FL_B2 + 128*144; FL_X = FL_B + 128*144; FL_D = FL_B + 64; FL_A = FL_X + 128*256; FL_KB = 114
assert FL_A + 128*112 == WS_FL + 1024*FL_KB
GS = 16384 + 128
WS_YG = WS_KT
WS_STAMP = 128*MB
WS_BYTES = 0x10000000

ARG = dict(x=0, Are=8, Aim=16, Bre=24, Bim=32, Cre=40, Cim=48, logdt=56, dskip=64, wg=80, wu=88, wd=96, out=104, dbg=112, ws=120)

def srd(a, s, base, nbytes):
    a(f"""s_mov_b32 s{s}, s{base}
    s_mov_b32 s{s+1}, s{base+1}
    s_mov_b32 s{s+2}, {nbytes:#x}
    s_mov_b32 s{s+3}, 0x00020000""")

class Diag:
    def __init__(self, on, kidx): self.on, self.kidx, self.n = on, kidx, 0
    def stamp(self, a, i):
        if self.on:
            a(f"s_memrealtime s[{84+2*i}:{85+2*i}]")
    def cyc(self, a, i):
        if self.on: a(f"s_memtime s[{76+2*i}:{77+2*i}]"); self.n = 1
    def tick_init(self, a, v):
        if self.on: a(f"s_mov_b32 s81, 0\nv_mov_b32 v{v}, 0"); self.tv = v
    def tick_a(self):
        return ["s_memtime s[100:101]"] if self.on else []
    def tick_b(self):
        return [f"v_cmp_eq_u32 vcc, s81, v1", f"v_mov_b32 v{self.tv-1}, s100", "s_add_u32 s81, s81, 1", f"v_cndmask_b32 v{self.tv}, v{self.tv}, v{self.tv-1}, vcc"] if self.on else []
    def flush(self, a, wsrd, nst, wpw, vt=4):
        if not self.on: return
        a("s_waitcnt vmcnt(0)")
        self.stamp(a, nst-1)
        a("s_waitcnt lgkmcnt(0)")
        a(f"""s_mul_i32 s82, s2, {wpw}
        s_add_u32 s82, s82, s6
        s_lshl_b32 s82, s82, 5
        s_add_u32 s82, s82, {WS_STAMP + self.kidx*0x40000}
        v_mov_b32 v{vt+8}, 0""")
        for i in range(8): a(f"v_mov_b32 v{vt+i}, s{84+2*min(i,nst-1)}")
        if self.n: a(f"s_sub_u32 s76, s78, s76\nv_mov_b32 v{vt+6}, s76")
        a(f"""buffer_store_dwordx4 v[{vt}:{vt+3}], v{vt+8}, s[{wsrd}:{wsrd+3}], s82 offen
        buffer_store_dwordx4 v[{vt+4}:{vt+7}], v{vt+8}, s[{wsrd}:{wsrd+3}], s82 offen offset:16""")
        if getattr(self, "tv", None) is not None:
            a(f"""s_sub_u32 s82, s82, {WS_STAMP + self.kidx*0x40000}
            s_lshl_b32 s82, s82, 3
            s_add_u32 s82, s82, {WS_STAMP + 0x400000}
            v_lshlrev_b32 v{vt+8}, 2, v1
            buffer_store_dword v{self.tv}, v{vt+8}, s[{wsrd}:{wsrd+3}], s82 offen""")

def round_bf16(a, v):
    a(f"v_cvt_pk_bf16_f32 v{v}, v{v}, v{v}\nv_and_b32 v{v}, 0xffff0000, v{v}")

def ln_finish(a, vs, vq, vt):
    a(f"""v_mul_f32 v{vs}, 0x3ae38e39, v{vs}
    v_mul_f32 v{vt}, v{vs}, v{vs}
    v_mul_f32 v{vq}, 0x3ae38e39, v{vq}
    v_sub_f32 v{vq}, v{vq}, v{vt}
    v_max_f32 v{vq}, 0, v{vq}""")
    round_bf16(a, vq)
    a(f"v_add_f32 v{vq}, 0x3727c5ac, v{vq}")
    round_bf16(a, vq)
    a(f"v_sqrt_f32 v{vq}, v{vq}")
    round_bf16(a, vs)
    round_bf16(a, vq)
    a(f"v_rcp_f32 v{vq}, v{vq}\ns_nop 0")

import re as _re
def resolve_waits(text, traces):
    segs, cur = {}, None
    lines = text.split("\n")
    for i, l in enumerate(lines):
        m = _re.search(r";#seg (\w+)", l)
        if m: cur = m.group(1); segs[cur] = []; continue
        if cur is None: continue
        m = _re.search(r"vmcnt\(@([^@]*)@\)", l)
        if m:
            segs[cur].append(("w", i, [(x.split(":")[0], int(x.split(":")[1])) for x in m.group(1).split(",")])); continue
        s = l.strip()
        if s.startswith(("buffer_", "global_")):
            m = _re.search(r";#op (\w+)", l)
            assert m or ";#nc" in l, "unclassified vmem op: " + l
            if m: segs[cur].append(("o", m.group(1)))
        elif _re.search(r"vmcnt\(0\)", l) and ";#nc" not in l: segs[cur].append(("z",))
    best = {}
    for tr in traces:
        q = []
        for name in tr:
            for it in segs[name]:
                if it[0] == "o": q.append(it[1])
                elif it[0] == "z": q = []
                else:
                    n = 63
                    for cls, m in it[2]:
                        idx = [k for k, c in enumerate(q) if c == cls]
                        if len(idx) > m: n = min(n, len(q) - 1 - idx[-1-m])
                    best[it[1]] = min(best.get(it[1], 63), n)
    for i, n in best.items():
        lines[i] = _re.sub(r"vmcnt\(@[^@]*@\)", f"vmcnt({n})", lines[i])
    out = "\n".join(lines)
    assert "@)" not in out
    return _re.sub(r"[ \t]*;#(op|seg|nc)[^\n]*", "", out)
```

```python
import sys
sys.path.insert(0,"gen")
import build
def both(name, opts, chk=False):
    build.build(["kp"], f"exp/{name}.s", False, {"kp": opts})
    build.build(["kp"], f"exp/{name}_d.s", True, {"kp": opts})
    if chk: build.check(f"exp/{name}_d.s")
if __name__ == "__main__":
    for i, spec in enumerate(sys.argv[1:]):
        name, _, o = spec.partition(":")
        both(name, eval("dict(" + o + ")"), chk=(i == 0))
```
